```python
import torch

def _softmax(x, axis=-1):
    return torch.softmax(x, dim=axis)
def _gelu(x):
    return torch.nn.functional.gelu(x, approximate="tanh")
def _silu(x):
    return torch.nn.functional.silu(x)
def _sigmoid(x):
    return torch.sigmoid(x)
def _layernorm(x, axis=-1, eps=1e-5):
    m = x.mean(dim=axis, keepdim=True)
    v = x.var(dim=axis, keepdim=True, unbiased=False)
    return (x - m) / torch.sqrt(v + eps)
def _scatter_add(tgt, idx, src, axis=0):
    return tgt.clone().index_add_(axis, idx, src)
def _segment_sum(src, seg, n):
    out = torch.zeros((n,) + src.shape[1:], dtype=src.dtype)
    return out.index_add_(0, seg, src)
def _pad(x, pw):
    flat = tuple(v for pair in reversed(pw) for v in pair)
    return torch.nn.functional.pad(x, flat)

kernel_name = 'standalone__glu_gated_geglu__sampling'

def setup_inputs():

    _w = (lambda a: (lambda t: t.to(torch.bfloat16) if t.is_floating_point() else t)(torch.as_tensor(a)))
    B, S, Dm, Df = 8, 16, 1024, 3584
    return {
        "x": _w((lambda *s: torch.randn(*s, dtype=torch.bfloat16) * 0.05)(B, S, Dm)),
        "w_gate": _w((lambda *s: torch.randn(*s, dtype=torch.bfloat16) * 0.05)(Dm, Df) * (Dm ** -0.5)),
        "w_up": _w((lambda *s: torch.randn(*s, dtype=torch.bfloat16) * 0.05)(Dm, Df) * (Dm ** -0.5)),
        "w_down": _w((lambda *s: torch.randn(*s, dtype=torch.bfloat16) * 0.05)(Df, Dm) * (Df ** -0.5)),
    }

def reference(x, w_gate, w_up, w_down):
    g = torch.einsum("bsd,df->bsf", x, w_gate)
    u = torch.einsum("bsd,df->bsf", x, w_up)
    h = _gelu(g) * u
    return torch.einsum("bsf,fd->bsd", h, w_down)
```

```python
KN = "standalone__glu_gated_geglu__sampling_kernel"
HEADER = """; Kernarg layout (56 bytes, ptrs only, base s[0:1]):
"""
class Asm:
    def __init__(self):
        self.lines = []
    def __call__(self, s):
        for l in s.strip("\n").split("\n"):
            self.lines.append(l)
    def text(self):
        return "\n".join(self.lines) + "\n"

def kernel_begin(a, name):
    a(f".text\n.globl {name}\n.p2align 8\n.type {name},@function\n{name}:")

def kernel_desc(a, name, vgpr, sgpr, accum, extra=""):
    a(f""".section .rodata,"a"
.p2align 6
.amdhsa_kernel {name}
  .amdhsa_next_free_vgpr {vgpr}
  .amdhsa_next_free_sgpr {sgpr}
  .amdhsa_accum_offset {accum}
  .amdhsa_group_segment_fixed_size 0
  .amdhsa_kernarg_size 56
  .amdhsa_user_sgpr_count 2
  .amdhsa_user_sgpr_kernarg_segment_ptr 1
  .amdhsa_system_sgpr_workgroup_id_x 1
{extra}.end_amdhsa_kernel""")

def srd(a, d, base, nbytes):
    a(f"""    s_mov_b32 s{d}, s{base}
    s_mov_b32 s{d+1}, s{base+1}
    s_mov_b32 s{d+2}, {nbytes}
    s_mov_b32 s{d+3}, 0x00020000""")
```

```python
import sys
from asmlib import *

H_OFF = 0
P_OFF = 0x100000
STAMP = 0x8000000

def stamp_store(a, regs, base_off, sws, nslots):
    a(f"    s_waitcnt lgkmcnt(0)")
    a(f"    v_cmp_eq_u32 vcc, 0, v0\n    s_and_saveexec_b64 s[94:95], vcc\n    s_cbranch_execz L_st_{base_off}")
    a(f"    s_mul_i32 s93, s2, {nslots*8}\n    s_add_u32 s93, s93, {STAMP}\n    v_mov_b32 v1, 0")
    for i, r in enumerate(regs):
        a(f"    v_mov_b32 v2, s{r}\n    v_mov_b32 v3, s{r+1}\n    buffer_store_dwordx2 v[2:3], v1, s[{sws}:{sws+3}], s93 offen offset:{(base_off+i)*8}\n    s_nop 1")
    a(f"L_st_{base_off}:\n    s_mov_b64 exec, s[94:95]")

def gen(wflags="", dflags="", stamps=False, rot=True):
    a = Asm()
    a(HEADER.rstrip())
    a("; @launch kernel=p1_kernel grid=(256,1,1) block=(256,1,1) lds=131072")
    a("; @launch kernel=p2_kernel grid=(256,1,1) block=(256,1,1) lds=57344")
    a("; @launch kernel=p3_kernel grid=(256,1,1) block=(128,1,1) lds=0")
    a('.amdgcn_target "amdgcn-amd-amdhsa--gfx950"')
    kernel_begin(a, "p1_kernel")
    a("""    s_cmp_ge_u32 s2, 224
    s_cbranch_scc1 L1_end""")
    if stamps: a("    s_memrealtime s[80:81]")
    a("""    s_load_dwordx4 s[4:7], s[0:1], 0
    s_load_dwordx2 s[8:9], s[0:1], 16
    s_load_dwordx2 s[12:13], s[0:1], 48
    s_and_b32 s14, s2, 7       ; grp
    s_lshr_b32 s15, s2, 3      ; idx 0..27
    v_lshrrev_b32 v1, 6, v0
    v_and_b32 v2, 63, v0       ; lane
    v_readfirstlane_b32 s33, v1   ; wave
    s_and_b32 s34, s15, 3      ; mq
    s_lshr_b32 s35, s15, 2     ; ftl
    s_waitcnt lgkmcnt(0)""")
    srd(a, 16, 4, 128*1024*2)
    srd(a, 20, 6, 1024*3584*2)
    srd(a, 24, 8, 1024*3584*2)
    srd(a, 28, 12, 0x10000000)
    a("""    s_lshl_b32 s36, s34, 16       ; mq*32*2048
    s_lshl_b32 s37, s33, 14       ; wave*8*2048
    s_add_u32 s36, s36, s37
    s_and_b32 s38, s33, 1
    s_lshl_b32 s38, s38, 3        ; (8w)&15""")
    for i in range(8):
        a(f"    s_add_u32 s39, s38, {i}\n    v_xor_b32 v3, s39, v2\n    v_lshlrev_b32 v3, 4, v3")
        for hf in range(2):
            a(f"    s_add_u32 m0, s37, {i*2048+hf*1024}\n    s_add_u32 s40, s36, {i*2048+hf*1024}\n    buffer_load_dwordx4 v3, s[16:19], s40 offen lds")
    a("""    v_lshrrev_b32 v6, 3, v2
    v_mul_u32_u24 v7, 7168, v6
    v_lshrrev_b32 v8, 4, v2
    v_and_b32 v8, 1, v8            ; bit1(row)
    v_lshlrev_b32 v8, 1, v8
    v_and_b32 v9, 7, v2
    v_xor_b32 v9, v9, v8
    v_lshl_add_u32 v4, v9, 4, v7
    v_xor_b32 v9, 4, v9
    v_lshl_add_u32 v5, v9, 4, v7""")
    a("""    s_mul_i32 s41, s14, 896
    s_lshl_b32 s42, s35, 7
    s_add_u32 s41, s41, s42
    s_mul_i32 s42, s33, 229376
    s_add_u32 s41, s41, s42
    s_lshl_b32 s43, s33, 12""")
    if rot:
        a("    s_lshl_b32 s44, s34, 1")
    else:
        a("    s_mov_b32 s44, 0")
    def issue_chunk(bufreg_or_const):
        a("    s_mul_i32 s46, s44, 917504\n    s_add_u32 s46, s46, s41\n    s_add_u32 s47, s45, s43")
        for blk in range(4):
            v = 4 + (blk & 1)
            for mi, sr in enumerate((20, 24)):
                a(f"    s_add_u32 m0, s47, {blk*1024 + mi*16384}\n    s_nop 0\n    buffer_load_dwordx4 v{v}, s[{sr}:{sr+3}], s46 offen {wflags} lds")
            a("    s_add_u32 s46, s46, 57344")
        a("    s_add_u32 s44, s44, 1\n    s_and_b32 s44, s44, 7")
    a("    s_mov_b32 s48, s44\n    s_mov_b32 s45, 65536")
    issue_chunk(0)
    a("    s_mov_b32 s45, 98304")
    issue_chunk(1)
    a("""    s_and_b32 s50, s33, 1
    s_lshr_b32 s51, s33, 1
    v_and_b32 v10, 15, v2       ; m
    v_lshrrev_b32 v11, 4, v2    ; g
    s_lshl_b32 s52, s50, 15     ; mt*16*2048
    v_lshlrev_b32 v12, 11, v10
    v_add_u32 v12, s52, v12""")
    for q in range(4):
        a(f"    v_add_u32 v13, {4*q}, v11\n    v_xor_b32 v13, v13, v10\n    v_lshl_add_u32 v{14+q}, v13, 4, v12")
    a("""    v_lshrrev_b32 v13, 2, v2
    v_and_b32 v13, 3, v13          ; r
    v_lshl_add_u32 v20, v11, 3, v13   ; 8g+r
    v_lshlrev_b32 v20, 7, v20
    v_lshrrev_b32 v13, 1, v13      ; bit1(r)
    v_and_b32 v21, 1, v11
    v_lshl_add_u32 v13, v21, 1, v13  ; sigma
    v_and_b32 v21, 3, v2
    v_lshl_add_u32 v20, v21, 3, v20
    v_add_u32 v20, 0x10000, v20
    s_lshl_b32 s52, s51, 1
    v_xor_b32 v21, s52, v13
    v_lshl_add_u32 v18, v21, 5, v20
    v_xor_b32 v21, 1, v21
    v_lshl_add_u32 v19, v21, 5, v20""")
    for i in range(16): a(f"    v_mov_b32 v{32+i}, 0")
    a("    s_waitcnt vmcnt(16)\n    s_barrier")
    a("    s_mov_b32 s49, 0\nL1_loop:")
    a("    s_waitcnt vmcnt(8)\n    s_barrier")
    a("    s_lshl_b32 s53, s48, 8\n    s_and_b32 s54, s49, 1\n    s_lshl_b32 s54, s54, 15")
    for q in range(4): a(f"    v_add_u32 v{22+q}, s53, v{14+q}")
    a("    v_add_u32 v26, s54, v18\n    v_add_u32 v27, s54, v19")
    for ks in range(4):
        a(f"    ds_read_b128 v[48:51], v{22+ks}")
        for mi in range(2):
            for j in range(2):
                r = 52 + (mi*2+j)*4
                a(f"    ds_read_b64_tr_b16 v[{r}:{r+1}], v{26+j} offset:{ks*4096+mi*16384}")
                a(f"    ds_read_b64_tr_b16 v[{r+2}:{r+3}], v{26+j} offset:{ks*4096+mi*16384+512}")
        a("    s_waitcnt lgkmcnt(0)")
        for mi in range(2):
            for j in range(2):
                r = 52 + (mi*2+j)*4; c = 32 + (mi*2+j)*4
                a(f"    v_mfma_f32_16x16x32_bf16 v[{c}:{c+3}], v[{r}:{r+3}], v[48:51], v[{c}:{c+3}]")
    a("    s_barrier")
    a("    s_add_u32 s48, s48, 1\n    s_and_b32 s48, s48, 7\n    s_add_u32 s49, s49, 1")
    a("    s_cmp_ge_u32 s49, 7\n    s_cbranch_scc1 L1_noissue")
    a("    s_add_u32 s45, s54, 65536")
    issue_chunk(0)
    a("    s_branch L1_loop\nL1_noissue:\n    s_waitcnt vmcnt(0)\n    s_cmp_lt_u32 s49, 8\n    s_cbranch_scc1 L1_loop")
    if stamps: a("    s_memrealtime s[82:83]")
    a("    s_nop 7\n    s_mov_b32 s55, 0xc0135761   ; c1=-2.302208\n    s_mov_b32 s56, 0xbdd2d3e8  ; c2")
    a("    v_mov_b32 v60, s55")
    for e in range(8):
        g = 32 + e; u = 40 + e
        a(f"""    v_mul_f32 v61, v{g}, v{g}
    v_fma_f32 v61, v61, s56, v60
    v_mul_f32 v61, v61, v{g}
    v_exp_f32 v61, v61
    s_nop 0
    v_add_f32 v61, 1.0, v61
    v_rcp_f32 v61, v61
    s_nop 0
    v_mul_f32 v61, v61, v{g}
    v_mul_f32 v{64+e}, v61, v{u}""")
    for i in range(4): a(f"    v_cvt_pk_bf16_f32 v{72+i}, v{64+2*i}, v{65+2*i}")
    a(f"""    s_lshl_b32 s57, s34, 1
    s_add_u32 s57, s57, s50
    s_mul_i32 s57, s57, 112
    s_mul_i32 s58, s14, 14
    s_add_u32 s57, s57, s58
    s_lshl_b32 s58, s35, 1
    s_add_u32 s57, s57, s58
    s_add_u32 s57, s57, s51
    s_lshl_b32 s57, s57, 10
    v_lshlrev_b32 v3, 4, v2
    buffer_store_dwordx4 v[72:75], v3, s[28:31], s57 offen""")
    if stamps:
        a("    s_waitcnt vmcnt(0)\n    s_memrealtime s[84:85]")
        stamp_store(a, [80, 82, 84], 0, 28, 8)
    a("L1_end:\n    s_endpgm")
    kernel_begin(a, "p2_kernel")
    a("""    s_cmp_ge_u32 s2, 256
    s_cbranch_scc1 L2_end""")
    if stamps: a("    s_memrealtime s[80:81]")
    a("""    s_load_dwordx2 s[4:5], s[0:1], 24
    s_load_dwordx2 s[12:13], s[0:1], 48
    s_and_b32 s14, s2, 7       ; grp
    s_lshr_b32 s15, s2, 3      ; idx
    v_lshrrev_b32 v1, 6, v0
    v_and_b32 v2, 63, v0       ; lane
    v_readfirstlane_b32 s33, v1   ; wave
    s_and_b32 s34, s15, 1      ; mh
    s_lshr_b32 s35, s15, 1     ; nt
    s_waitcnt lgkmcnt(0)""")
    srd(a, 16, 4, 1024*3584*2)
    srd(a, 28, 12, 0x10000000)
    a("""    v_lshrrev_b32 v6, 3, v2
    v_lshlrev_b32 v7, 11, v6        ; row*2048
    v_lshrrev_b32 v8, 4, v2         ; (row>>1)&3
    v_lshlrev_b32 v8, 1, v8
    v_and_b32 v9, 7, v2
    v_xor_b32 v9, v9, v8
    v_lshl_add_u32 v4, v9, 4, v7
    s_mul_i32 s36, s14, 917504      ; grp*448*2048
    s_lshl_b32 s37, s35, 7
    s_add_u32 s36, s36, s37
    s_mul_i32 s37, s33, 229376
    s_add_u32 s36, s36, s37
    s_mul_i32 s38, s33, 14336""")
    for b in range(14):
        a(f"    s_add_u32 m0, s38, {b*1024}\n    s_add_u32 s39, s36, {b*16384}\n    buffer_load_dwordx4 v4, s[16:19], s39 offen {dflags} lds")
    a("""    s_lshl_b32 s40, s34, 2
    s_add_u32 s40, s40, s33
    s_mul_i32 s40, s40, 112
    s_mul_i32 s41, s14, 14
    s_add_u32 s40, s40, s41
    s_lshl_b32 s40, s40, 10
    v_lshlrev_b32 v3, 4, v2""")
    for ks in range(14):
        a(f"    buffer_load_dwordx4 v[{64+4*ks}:{67+4*ks}], v3, s[28:31], s40 offen\n    s_add_u32 s40, s40, 1024")
    a("""    v_lshrrev_b32 v11, 4, v2    ; g
    v_lshrrev_b32 v13, 2, v2       ; 4g+r
    v_lshrrev_b32 v14, 1, v13
    v_and_b32 v14, 3, v14          ; sigma'
    v_lshlrev_b32 v13, 7, v13
    v_and_b32 v15, 3, v2
    v_lshl_add_u32 v13, v15, 3, v13""")
    for s in range(4):
        a(f"    v_xor_b32 v15, {s}, v14\n    v_lshl_add_u32 v{20+s}, v15, 5, v13")
    for i in range(16): a(f"    v_mov_b32 v{32+i}, 0")
    a("    s_waitcnt vmcnt(0)\n    s_barrier")
    for ks in range(14):
        for s in range(4):
            r = 48 + s*4
            a(f"    ds_read_b64_tr_b16 v[{r}:{r+1}], v{20+s} offset:{ks*4096}")
            a(f"    ds_read_b64_tr_b16 v[{r+2}:{r+3}], v{20+s} offset:{ks*4096+2048}")
        a("    s_waitcnt lgkmcnt(0)")
        for s in range(4):
            r = 48 + s*4; c = 32+4*s
            a(f"    v_mfma_f32_16x16x32_bf16 v[{c}:{c+3}], v[{r}:{r+3}], v[{64+4*ks}:{67+4*ks}], v[{c}:{c+3}]")
    a(f"""    s_lshl_b32 s42, s15, 17
    s_lshl_b32 s43, s33, 15
    s_add_u32 s42, s42, s43
    s_lshl_b32 s43, s14, 11
    s_add_u32 s42, s42, s43
    s_add_u32 s42, s42, {P_OFF}
    v_and_b32 v5, 7, v2
    v_lshl_add_u32 v5, v11, 3, v5
    v_lshlrev_b32 v5, 4, v5
    v_and_b32 v6, 8, v2
    v_lshl_add_u32 v5, v6, 11, v5
    s_nop 7""")
    for s in range(4):
        a(f"    buffer_store_dwordx4 v[{32+4*s}:{35+4*s}], v5, s[28:31], s42 offen offset:{s*512}")
    if stamps:
        a("    s_waitcnt vmcnt(0)\n    s_memrealtime s[84:85]")
        stamp_store(a, [80, 84], 3, 28, 8)
    a("L2_end:\n    s_endpgm")
    kernel_begin(a, "p3_kernel")
    a("""    s_cmp_ge_u32 s2, 256
    s_cbranch_scc1 L3_end""")
    if stamps: a("    s_memrealtime s[80:81]")
    a("""    s_load_dwordx2 s[4:5], s[0:1], 32
    s_load_dwordx2 s[12:13], s[0:1], 48
    s_and_b32 s14, s2, 7       ; piece
    s_lshr_b32 s15, s2, 3      ; tile
    s_waitcnt lgkmcnt(0)""")
    srd(a, 16, 4, 128*1024*2)
    srd(a, 28, 12, 0x10000000)
    a(f"""    s_lshl_b32 s42, s15, 17
    s_lshl_b32 s43, s14, 14
    s_add_u32 s42, s42, s43
    s_add_u32 s42, s42, {P_OFF}
    v_lshlrev_b32 v3, 4, v0""")
    for s in range(8):
        a(f"    buffer_load_dwordx4 v[{8+4*s}:{11+4*s}], v3, s[28:31], s42 offen\n    s_add_u32 s42, s42, 2048")
    a("""    s_and_b32 s34, s15, 1
    s_lshr_b32 s35, s15, 1
    s_lshl_b32 s34, s34, 17
    s_lshl_b32 s36, s14, 14
    s_add_u32 s34, s34, s36
    s_lshl_b32 s35, s35, 7
    s_add_u32 s34, s34, s35
    v_and_b32 v4, 7, v0
    v_lshlrev_b32 v4, 11, v4
    v_lshrrev_b32 v5, 3, v0
    v_lshl_add_u32 v4, v5, 3, v4""")
    for s in range(1, 8):
        a(f"    s_waitcnt vmcnt({7-s})")
        for i in range(4): a(f"    v_add_f32 v{8+i}, v{8+i}, v{8+4*s+i}")
    a("""    v_cvt_pk_bf16_f32 v6, v8, v9
    v_cvt_pk_bf16_f32 v7, v10, v11
    buffer_store_dwordx2 v[6:7], v4, s[16:19], s34 offen""")
    if stamps:
        a("    s_waitcnt vmcnt(0)\n    s_memrealtime s[84:85]")
        stamp_store(a, [80, 84], 5, 28, 8)
    a("L3_end:\n    s_endpgm")
    kernel_desc(a, "p1_kernel", 128, 96, 128)
    kernel_desc(a, "p2_kernel", 128, 96, 128)
    kernel_desc(a, "p3_kernel", 64, 96, 64)
    return a.text()

if __name__ == "__main__":
    import struct
    c1 = -2*1.4426950408889634*0.7978845608028654
    print(hex(struct.unpack("<I", struct.pack("<f", c1))[0]), hex(struct.unpack("<I", struct.pack("<f", c1*0.044715))[0]))
    open("k3_def.s","w").write(gen())
    open("k3_nt.s","w").write(gen("nt","nt"))
    open("k3_def_st.s","w").write(gen(stamps=True))
    open("k3_nt_st.s","w").write(gen("nt","nt",stamps=True))
```

```python
from asmlib import *
import gen3k
def probe(kind, A, flags=""):
    a = Asm()
    kernel_begin(a, "p0_kernel")
    a("""    s_cmp_ge_u32 s2, 256
    s_cbranch_scc1 L0_end
    s_memrealtime s[40:41]
    s_load_dwordx4 s[4:7], s[0:1], 0
    s_load_dwordx4 s[8:11], s[0:1], 16
    s_waitcnt lgkmcnt(0)""")
    srd(a, 16, 10, 1024*3584*2)
    srd(a, 20, 6, 1024*3584*2)
    srd(a, 24, 8, 1024*3584*2)
    a("    s_mul_i32 s35, s2, 28672\n    v_lshlrev_b32 v5, 4, v0\n    s_memrealtime s[42:43]\n    s_waitcnt lgkmcnt(0)")
    r = 16
    if kind == "lin":
        for i in range(7):
            for m in (20, 24, 16):
                a(f"    buffer_load_dwordx4 v[{r}:{r+3}], v5, s[{m}:{m+3}], s35 offen {flags}"); r += 4
            a("    s_add_u32 s35, s35, 4096")
    elif kind == "lat":
        a(f"    v_mov_b32 v5, 0\n    s_lshr_b32 s36, s2, 0\n    s_cmp_lg_u32 s2, 0\n    s_cbranch_scc1 L0_end")
        a(f"    buffer_load_dword v16, v5, s[20:23], 0 offen\n    s_waitcnt vmcnt(0)\n    s_memrealtime s[42:43]\n    s_waitcnt lgkmcnt(0)")
        for i in range(8):
            a(f"    v_add_u32 v5, 0x1480, v5\n    buffer_load_dword v16, v5, s[20:23], 0 offen {flags}\n    s_waitcnt vmcnt(0)\n    v_and_b32 v16, 0, v16\n    v_add_u32 v5, v5, v16")
    elif kind == "null":
        pass
    a(f"""    s_waitcnt vmcnt(0)
    s_barrier
    s_memrealtime s[48:49]
    s_waitcnt lgkmcnt(0)
    s_sub_u32 s50, s48, s42
    s_mul_i32 s50, s50, {A}
    s_min_u32 s50, s50, 100000
L0_spin:
    s_memrealtime s[52:53]
    s_waitcnt lgkmcnt(0)
    s_sub_u32 s54, s52, s48
    s_cmp_lt_u32 s54, s50
    s_cbranch_scc1 L0_spin
L0_end:
    s_endpgm""")
    kernel_desc(a, "p0_kernel", 128, 96, 128)
    return a.text()
def gen(kind, A, flags=""):
    base = gen3k.gen()
    lines = base.split("\n")
    i = [k for k,l in enumerate(lines) if "@launch kernel=p1_kernel" in l][0]
    lines.insert(i, "; @launch kernel=p0_kernel grid=(256,1,1) block=(256,1,1) lds=0")
    return "\n".join(lines) + probe(kind, A, flags)
open("pr_null.s","w").write(gen("null", 0))
open("pr_lin.s","w").write(gen("lin", 10))
open("pr_lin_nt.s","w").write(gen("lin", 10, "nt"))
open("pr_lat.s","w").write(gen("lat", 10))
```

```python
from asmlib import *
import gen3k
def gen(A):
    base = gen3k.gen()
    lines = base.split("\n")
    i = [k for k,l in enumerate(lines) if "@launch kernel=p1_kernel" in l][0]
    lines.insert(i, "; @launch kernel=p0_kernel grid=(1,1,1) block=(64,1,1) lds=0")
    i = [k for k,l in enumerate(lines) if "@launch kernel=p3_kernel" in l][0]
    lines.insert(i+1, "; @launch kernel=p4_kernel grid=(1,1,1) block=(64,1,1) lds=0")
    a = Asm()
    kernel_begin(a, "p0_kernel")
    a("""    s_cmp_ge_u32 s2, 1
    s_cbranch_scc1 L0_end
    s_memrealtime s[40:41]
    s_load_dwordx2 s[12:13], s[0:1], 48
    s_waitcnt lgkmcnt(0)""")
    srd(a, 28, 12, 0x10000000)
    a("""    v_mov_b32 v2, s40
    v_mov_b32 v1, 0x9000000
    buffer_store_dword v2, v1, s[28:31], 0 offen
    s_waitcnt vmcnt(0)
L0_end:
    s_endpgm""")
    kernel_begin(a, "p4_kernel")
    a("""    s_cmp_ge_u32 s2, 1
    s_cbranch_scc1 L4_end
    s_memrealtime s[48:49]
    s_load_dwordx2 s[12:13], s[0:1], 48
    s_waitcnt lgkmcnt(0)""")
    srd(a, 28, 12, 0x10000000)
    a(f"""    v_mov_b32 v1, 0x9000000
    buffer_load_dword v2, v1, s[28:31], 0 offen
    s_waitcnt vmcnt(0)
    v_readfirstlane_b32 s42, v2
    s_nop 3
    s_sub_u32 s50, s48, s42
    s_mul_i32 s50, s50, {A}
    s_min_u32 s50, s50, 100000
L4_spin:
    s_memrealtime s[52:53]
    s_waitcnt lgkmcnt(0)
    s_sub_u32 s54, s52, s48
    s_cmp_lt_u32 s54, s50
    s_cbranch_scc1 L4_spin
L4_end:
    s_endpgm""")
    kernel_desc(a, "p0_kernel", 32, 96, 32)
    kernel_desc(a, "p4_kernel", 32, 96, 32)
    return "\n".join(lines) + a.text()
open("pr2_a0.s","w").write(gen(0))
open("pr2_a4.s","w").write(gen(4))
```

```python
from asmlib import *
import gen3k
def gen(A, nb=8192, jump=0, pref=False, warmjump=0, dense=False):
    base = gen3k.gen()
    lines = base.split("\n")
    i = [k for k,l in enumerate(lines) if "@launch kernel=p1_kernel" in l][0]
    lines.insert(i, "; @launch kernel=p0_kernel grid=(256,1,1) block=(256,1,1) lds=0")
    a = Asm()
    kernel_begin(a, "p0_kernel")
    a("""    s_cmp_ge_u32 s2, 256
    s_cbranch_scc1 L0_end
    s_mov_b32 s39, 0
    s_nop 0""")
    if pref:
        a("    s_getpc_b64 s[40:41]\n    v_lshlrev_b32 v4, 7, v0\n    global_load_dword v5, v4, s[40:41]\n    s_waitcnt vmcnt(0)")
    if warmjump:
        a("    s_mov_b32 s39, 1\n    s_branch L0_w0\nL0_back:\n    s_mov_b32 s39, 0")
    a("    s_memrealtime s[64:65]")
    a(".p2align 8")
    if jump:
        for i in range(nb//jump):
            a(f"    s_branch L0_j{i}")
            for k in range(jump//4-1): a("    s_nop 0")
            a(f"L0_j{i}:")
    elif warmjump:
        n = nb//warmjump
        for i in range(n):
            a(f"    s_branch L0_o{i}\nL0_w{i}:\n    s_branch {'L0_w%d'%(i+1) if i+1<n else 'L0_back'}\nL0_o{i}:")
            for k in range((warmjump-8)//8): a("    s_mov_b32 s50, 0x12345678")
    else:
        for i in range(nb//8): a("    s_mov_b32 s50, 0x12345678")
    a(f"""    s_memrealtime s[66:67]
    s_waitcnt lgkmcnt(0)
    s_sub_u32 s50, s66, s64
    s_mul_i32 s50, s50, {A}
    s_min_u32 s50, s50, 100000
L0_spin:
    s_memrealtime s[52:53]
    s_waitcnt lgkmcnt(0)
    s_sub_u32 s54, s52, s66
    s_cmp_lt_u32 s54, s50
    s_cbranch_scc1 L0_spin
L0_end:
    s_endpgm""")
    kernel_desc(a, "p0_kernel", 32, 96, 32)
    return "\n".join(lines) + a.text()
open("pr4_j1k.s","w").write(gen(10, 16384, 1024))
open("pr4_j1k_pref.s","w").write(gen(10, 16384, 1024, pref=True))
open("pr4_lin_pref.s","w").write(gen(10, 8192, pref=True))
open("pr4_lin.s","w").write(gen(10, 8192))
open("pr4_w256.s","w").write(gen(10, 8192, warmjump=256))
open("pr4_w128.s","w").write(gen(10, 8192, warmjump=128))
```

```python
from asmlib import *
import gen3k
def gen(block, lds, vgpr, n=4, where="front"):
    base = gen3k.gen()
    lines = base.split("\n")
    i = [k for k,l in enumerate(lines) if "@launch kernel=p1_kernel" in l][0]
    for _ in range(n):
        lines.insert(i, f"; @launch kernel=p0_kernel grid=(256,1,1) block=({block},1,1) lds={lds}")
    a = Asm()
    kernel_begin(a, "p0_kernel")
    a("    s_endpgm")
    kernel_desc(a, "p0_kernel", vgpr, 96, vgpr)
    return "\n".join(lines) + a.text()
open("pr5_a.s","w").write(gen(64, 0, 32))
open("pr5_b.s","w").write(gen(512, 163840, 256))
open("pr5_c.s","w").write(gen(512, 0, 32))
open("pr5_d.s","w").write(gen(256, 163840, 32))
open("pr5_e.s","w").write(gen(256, 0, 256))
```
